```python
import torch

def _softmax(x, axis=-1):
    return torch.softmax(x, dim=axis)
def _gelu(x):
    return torch.nn.functional.gelu(x, approximate="tanh")
def _silu(x):
    return torch.nn.functional.silu(x)
def _sigmoid(x):
    return torch.sigmoid(x)
def _layernorm(x, axis=-1, eps=1e-5):
    m = x.mean(dim=axis, keepdim=True)
    v = x.var(dim=axis, keepdim=True, unbiased=False)
    return (x - m) / torch.sqrt(v + eps)
def _scatter_add(tgt, idx, src, axis=0):
    return tgt.clone().index_add_(axis, idx, src)
def _segment_sum(src, seg, n):
    out = torch.zeros((n,) + src.shape[1:], dtype=src.dtype)
    return out.index_add_(0, seg, src)
def _pad(x, pw):
    flat = tuple(v for pair in reversed(pw) for v in pair)
    return torch.nn.functional.pad(x, flat)

kernel_name = 'concat_heads__gqa_block_cached__gqa_block_cached__near_ridge'

def setup_inputs():

    _w = (lambda a: (lambda t: t.to(torch.bfloat16) if t.is_floating_point() else t)(torch.as_tensor(a)))
    def _A_setup():
        B, Sq, D = 8, 64, 448
        Hq, Hkv, Sk, Dh = 16, 8, 64, 256
        assert Hq % Hkv == 0, (Hq, Hkv)
        return {
            "x": _w((lambda *s: torch.randn(*s, dtype=torch.bfloat16) * 0.8)(B, Sq, D)),
            "k_cache": _w((lambda *s: torch.randn(*s, dtype=torch.bfloat16) * 0.8)(B, Hkv, Sk, Dh)),
            "v_cache": _w((lambda *s: torch.randn(*s, dtype=torch.bfloat16) * 0.05)(B, Hkv, Sk, Dh)),
            "wq": _w((lambda *s: torch.randn(*s, dtype=torch.bfloat16) * 0.8)(D, Hq * Dh) * (D ** -0.5)),
            "wo": _w((lambda *s: torch.randn(*s, dtype=torch.bfloat16) * 0.05)(Hq * Dh, D) * ((Hq * Dh) ** -0.5)),
        }
    _A_in = _A_setup()

    def _B_setup():
        B, Sq, D = 8, 64, 448
        Hq, Hkv, Sk, Dh = 16, 8, 64, 256
        assert Hq % Hkv == 0, (Hq, Hkv)
        return {
            "x": _w((lambda *s: torch.randn(*s, dtype=torch.bfloat16) * 0.8)(B, Sq, D)),
            "k_cache": _w((lambda *s: torch.randn(*s, dtype=torch.bfloat16) * 0.8)(B, Hkv, Sk, Dh)),
            "v_cache": _w((lambda *s: torch.randn(*s, dtype=torch.bfloat16) * 0.05)(B, Hkv, Sk, Dh)),
            "wq": _w((lambda *s: torch.randn(*s, dtype=torch.bfloat16) * 0.8)(D, Hq * Dh) * (D ** -0.5)),
            "wo": _w((lambda *s: torch.randn(*s, dtype=torch.bfloat16) * 0.05)(Hq * Dh, D) * ((Hq * Dh) ** -0.5)),
        }
    _B_in = _B_setup()

    return {
        "A_x": _A_in["x"],
        "A_k_cache": _A_in["k_cache"],
        "A_v_cache": _A_in["v_cache"],
        "A_wq": _A_in["wq"],
        "A_wo": _A_in["wo"],
        "B_x": _B_in["x"],
        "B_k_cache": _B_in["k_cache"],
        "B_v_cache": _B_in["v_cache"],
        "B_wq": _B_in["wq"],
        "B_wo": _B_in["wo"],
    }

def reference(A_x, A_k_cache, A_v_cache, A_wq, A_wo, B_x, B_k_cache, B_v_cache, B_wq, B_wo):
    def _A_ref(x, k_cache, v_cache, wq, wo):
        B, Sq, D = x.shape
        Hq, Dh = 16, 256
        Hkv = k_cache.shape[1]
        rep = Hq // Hkv
        q = (lambda x, *d: x.permute(*d))((x @ wq).reshape(B, Sq, Hq, Dh), 0, 2, 1, 3)
        k = (lambda x, n, axis: torch.repeat_interleave(x, n, dim=axis))(k_cache, rep, axis=1)
        v = (lambda x, n, axis: torch.repeat_interleave(x, n, dim=axis))(v_cache, rep, axis=1)
        scores = torch.einsum("bhqd,bhkd->bhqk", q, k) * (Dh ** -0.5)
        p = _softmax(scores, axis=-1)
        o = torch.einsum("bhqk,bhkd->bhqd", p, v)
        return (lambda x, *d: x.permute(*d))(o, 0, 2, 1, 3).reshape(B, Sq, Hq * Dh) @ wo

    def _B_ref(x, k_cache, v_cache, wq, wo):
        B, Sq, D = x.shape
        Hq, Dh = 16, 256
        Hkv = k_cache.shape[1]
        rep = Hq // Hkv
        q = (lambda x, *d: x.permute(*d))((x @ wq).reshape(B, Sq, Hq, Dh), 0, 2, 1, 3)
        k = (lambda x, n, axis: torch.repeat_interleave(x, n, dim=axis))(k_cache, rep, axis=1)
        v = (lambda x, n, axis: torch.repeat_interleave(x, n, dim=axis))(v_cache, rep, axis=1)
        scores = torch.einsum("bhqd,bhkd->bhqk", q, k) * (Dh ** -0.5)
        p = _softmax(scores, axis=-1)
        o = torch.einsum("bhqk,bhkd->bhqd", p, v)
        return (lambda x, *d: x.permute(*d))(o, 0, 2, 1, 3).reshape(B, Sq, Hq * Dh) @ wo

    a = _A_ref(A_x, A_k_cache, A_v_cache, A_wq, A_wo)
    b = _B_ref(B_x, B_k_cache, B_v_cache, B_wq, B_wo)
    return torch.concatenate([a, b], axis=-1)
```

```python
import re

REG_RE = re.compile(r'\b([vas])(\d+)\b|\b([vas])\[(\d+):(\d+)\]|\b(vcc|exec|m0|scc)\b')

def regs_of(tok):
    out = set()
    for m in REG_RE.finditer(tok):
        if m.group(1): out.add((m.group(1), int(m.group(2))))
        elif m.group(3):
            for r in range(int(m.group(4)), int(m.group(5)) + 1): out.add((m.group(3), r))
        else: out.add((m.group(6), 0))
    return out

TRANS = ('v_exp_f32', 'v_log_f32', 'v_rcp_f32', 'v_rsq_f32', 'v_sqrt_f32')

class Ins:
    __slots__ = ('text', 'kind', 'w', 'r', 'ws', 'op', 'srcc', 'ab')
    def __init__(self, text):
        self.text = text
        t = text.split(';')[0].strip()
        self.w = set(); self.r = set(); self.ws = 1; self.srcc = set(); self.ab = set()
        if not t or t.endswith(':') or t.startswith('.'):
            self.kind = 'label'; self.ws = 0; self.op = ''; return
        parts = t.split(None, 1)
        op = parts[0]; self.op = op
        ops = [o.strip() for o in parts[1].split(',')] if len(parts) > 1 else []
        if op == 's_nop':
            self.kind = 'nop'; self.ws = int(ops[0], 0) + 1
        elif op.startswith('v_mfma'):
            self.kind = 'mfma'; self.w = regs_of(ops[0]); self.ab = regs_of(ops[1]) | regs_of(ops[2]); self.srcc = regs_of(ops[3]); self.r = self.ab | self.srcc
        elif op.startswith('v_permlane'):
            self.kind = 'valu'; self.w = regs_of(ops[0]) | regs_of(ops[1]); self.r = set(self.w)
        elif op.startswith('v_cmp'):
            self.kind = 'valu'; self.w = regs_of(ops[0]); self.r = set().union(*[regs_of(o) for o in ops[1:]])
        elif op.startswith('v_'):
            self.kind = 'valu'; self.w = regs_of(ops[0]); self.r = set().union(*[regs_of(o) for o in ops[1:]]) if len(ops) > 1 else set()
            if op.startswith(('v_fmac', 'v_mac', 'v_pk_fmac', 'v_dot2c')): self.r |= self.w
            if op.startswith('v_cndmask') and len(ops) == 3: self.r.add(('vcc', 0))
        elif op.startswith('ds_read') or op.startswith('ds_bpermute') or op.startswith('ds_swizzle') or '_rtn' in op:
            self.kind = 'ds'; self.w = regs_of(ops[0]); self.r = set().union(*[regs_of(o.split(' offset')[0]) for o in ops[1:]])
        elif op.startswith('ds_'):
            self.kind = 'ds'; self.r = set().union(*[regs_of(o.split(' offset')[0]) for o in ops])
        elif op.startswith('buffer_load') or op.startswith('global_load'):
            self.kind = 'vmem'
            if re.search(r'\blds\b', t): self.r = set().union(*[regs_of(o) for o in ops]) | {('m0', 0)}
            else: self.w = regs_of(ops[0]); self.r = set().union(*[regs_of(o) for o in ops[1:]])
        elif op.startswith('buffer_') or op.startswith('global_'):
            self.kind = 'vmem'; self.r = set().union(*[regs_of(o) for o in ops])
            if 'store' in op and ('x4' in op or 'x3' in op): self.srcc = regs_of(ops[0])
        elif op.startswith('s_'):
            self.kind = 'salu'
            if op.startswith(('s_cmp', 's_cbranch', 's_branch', 's_waitcnt', 's_barrier', 's_endpgm', 's_setprio', 's_sleep')):
                self.r = set().union(*[regs_of(o) for o in ops]) if ops else set()
            else:
                self.w = regs_of(ops[0]) if ops else set(); self.r = set().union(*[regs_of(o) for o in ops[1:]]) if len(ops) > 1 else set()
        else:
            raise ValueError('unknown instr: ' + text)

def isv(rs): return {x for x in rs if x[0] in 'va'}
def iss(rs): return {x for x in rs if x[0] in ('s', 'vcc')}

def need(p, c):
    n = 0
    if p.kind == 'valu':
        pw = isv(p.w)
        if c.kind == 'mfma' and pw & c.r: n = max(n, 2)
        if c.kind == 'valu':
            if c.op.startswith('v_permlane') and pw & c.r: n = max(n, 2)
            if c.op.startswith(('v_readfirstlane', 'v_readlane')) and pw & c.r: n = max(n, 1)
            if p.op in TRANS and pw & c.r: n = max(n, 1)
            if 'dpp' in c.text and pw & c.r: n = max(n, 2)
        sw = iss(p.w)
        if sw:
            if c.kind == 'valu' and sw & c.r: n = max(n, 2)
            if c.kind == 'vmem' and sw & c.r: n = max(n, 5)
            if c.kind == 'salu' and sw & c.r: n = max(n, 2)
        if ('exec', 0) in p.w and c.kind in ('valu', 'mfma'): n = max(n, 4)
    if p.kind == 'mfma':
        passes = 8 if '32x32' in p.op else 4
        d = {4: 8, 8: 12}[passes]
        if c.kind == 'mfma':
            if p.w & c.ab: n = max(n, d)
            if p.w & c.srcc and p.w != c.srcc: n = max(n, {4: 6, 8: 10}[passes])
            if p.w & c.w and p.w != c.srcc: n = max(n, d)
        elif c.kind in ('valu', 'ds', 'vmem'):
            if p.w & (c.r | c.w): n = max(n, d)
            if c.kind == 'valu' and p.srcc & c.w: n = max(n, {4: 3, 8: 7}[passes])
    if p.kind == 'vmem' and p.srcc and c.kind in ('valu', 'mfma') and p.srcc & c.w: n = max(n, 2)
    if p.kind == 'vmem' and p.srcc and c.kind in ('ds', 'vmem') and p.srcc & c.w: n = max(n, 1)
    if p.kind == 'salu' and ('m0', 0) in p.w and c.kind == 'vmem' and ('m0', 0) in c.r: n = max(n, 1)
    if p.kind == 'salu' and ('exec', 0) in p.w and c.kind == 'mfma': n = max(n, 1)
    return n

class Kern:
    def __init__(self):
        self.ins = []
        self.vm_issued = 0; self.vm_done = 0
        self.lg_issued = 0; self.lg_done = 0
        self.nl = 0
    def __call__(self, s):
        ids = []
        for l in s.strip('\n').split('\n'):
            l = l.strip()
            if not l: continue
            i = Ins(l)
            self.ins.append(i)
            if i.kind == 'vmem': ids.append(('vm', self.vm_issued)); self.vm_issued += 1
            elif i.kind == 'ds': ids.append(('lg', self.lg_issued)); self.lg_issued += 1
        return ids[-1][1] if ids else None
    def label(self, name): self.ins.append(Ins(name + ':'))
    def newlabel(self, p='L'):
        self.nl += 1; return f'{p}_{self.nl}'
    def wait_vm(self, idx):
        if idx is None or idx < self.vm_done: return
        n = self.vm_issued - 1 - idx
        n = min(n, 63)
        self(f's_waitcnt vmcnt({n})')
        self.vm_done = max(self.vm_done, self.vm_issued - n)
    def wait_lg(self, idx):
        if idx is None or idx < self.lg_done: return
        n = self.lg_issued - 1 - idx
        n = min(n, 15)
        self(f's_waitcnt lgkmcnt({n})')
        self.lg_done = max(self.lg_done, self.lg_issued - n)
    def wait_all_vm(self):
        self('s_waitcnt vmcnt(0)'); self.vm_done = self.vm_issued
    def wait_all_lg(self):
        self('s_waitcnt lgkmcnt(0)'); self.lg_done = self.lg_issued
    def finalize(self):
        out = []
        nnop = 0
        for c in self.ins:
            if c.kind not in ('label', 'nop'):
                d = 0; req = 0
                for p in reversed(out[-40:]):
                    if d >= 12: break
                    if p.kind not in ('label', 'nop'):
                        nd = need(p, c)
                        if nd - d > req: req = nd - d
                    d += p.ws
                if req > 0:
                    while req > 0:
                        k = min(req, 16)
                        out.append(Ins(f's_nop {k-1}')); req -= k; nnop += 1
            out.append(c)
        self.nnop = nnop
        return '\n'.join(('' if i.kind == 'label' else '    ') + i.text for i in out) + '\n'
```

```python
NAME = 'concat_heads__gqa_block_cached__gqa_block_cached__near_ridge'
HEADER = open('cdna_kernels/' + NAME + '.s.ref').read().split('; Override launch')[0]

class Asm:
    def __init__(self):
        self.lines = []
        self.nlabel = 0
    def __call__(self, s, *args):
        for l in s.strip('\n').split('\n'):
            self.lines.append('    ' + l.strip())
    def label(self, name):
        self.lines.append(name + ':')
    def newlabel(self, pfx='L'):
        self.nlabel += 1
        return f'{pfx}_{self.nlabel}'
    def text(self):
        return '\n'.join(self.lines) + '\n'

def wrap(body, grid=256, block=256, lds=0, vgpr=256, sgpr=102, accum=None, kname=None):
    kname = kname or NAME + '_kernel'
    if accum is None: accum = min(256, (vgpr + 3) // 4 * 4)
    return (HEADER + f'; @launch grid=({grid},1,1) block=({block},1,1) lds={lds}\n'
        '.amdgcn_target "amdgcn-amd-amdhsa--gfx950"\n.text\n'
        f'.globl {kname}\n.p2align 8\n.type {kname},@function\n{kname}:\n'
        + body +
        '.section .rodata,"a"\n.p2align 6\n'
        f'.amdhsa_kernel {kname}\n'
        f'  .amdhsa_next_free_vgpr {vgpr}\n  .amdhsa_next_free_sgpr {sgpr}\n  .amdhsa_accum_offset {accum}\n'
        '  .amdhsa_group_segment_fixed_size 0\n  .amdhsa_kernarg_size 104\n  .amdhsa_user_sgpr_count 2\n'
        '  .amdhsa_user_sgpr_kernarg_segment_ptr 1\n  .amdhsa_system_sgpr_workgroup_id_x 1\n.end_amdhsa_kernel\n')
```

```python
import sys
from gencom import *
from emit import Kern

X_LDS, K_LDS, V_LDS = 0, 65536, 98304
SB = 0; VB = 0
P_WS = 0
X2_WS = 2 << 20
STAMP_WS = 128 << 20
RING0 = 64; NSLOT = 6
FR = 32

def gen(nt_w='nt', nt_kv='nt', nt_x='', stamps=False, dump=None):
    k = Kern()
    NST = 8
    def stamp(idx):
        if not stamps: return
        k(f's_memrealtime s[{102-2*NST-0+2*idx-0}:{102-2*NST+2*idx+1}]') if False else None
    k('''
    s_cmp_ge_u32 s2, 256
    s_cbranch_scc1 L_end
    s_load_dwordx16 s[4:19], s[0:1], 0
    s_load_dwordx4 s[20:23], s[0:1], 64
    s_load_dwordx4 s[24:27], s[0:1], 80
    s_load_dwordx2 s[28:29], s[0:1], 96
    s_and_b32 s74, s2, 7
    s_lshr_b32 s75, s2, 3
    s_lshr_b32 s64, s74, 2
    s_and_b32 s65, s74, 3
    s_lshr_b32 s66, s75, 2
    s_and_b32 s67, s75, 3
    v_lshrrev_b32 v4, 6, v0
    v_and_b32 v0, 63, v0
    v_readfirstlane_b32 s68, v4
    v_lshlrev_b32 v1, 4, v0
    v_and_b32 v2, 15, v0
    v_lshrrev_b32 v3, 4, v0
    s_lshl_b32 s69, s65, 2
    s_add_u32 s69, s69, s67
    s_and_b32 s70, s68, 1
    s_lshr_b32 s71, s68, 1
    s_mov_b32 s72, 0x05040100
    s_mov_b32 s73, 0x07060302
    ''')
    for p in range(7):
        r = 16 + p
        k(f'''
        v_add_u32 v5, {64*p}, v0
        v_mul_u32_u24 v6, 1171, v5
        v_lshrrev_b32 v6, 16, v6
        v_mul_u32_u24 v7, 56, v6
        v_sub_u32 v5, v5, v7
        v_and_b32 v7, 7, v6
        v_xor_b32 v5, v5, v7
        v_lshlrev_b32 v5, 4, v5
        v_mul_u32_u24 v6, 896, v6
        v_add_u32 v{r}, v5, v6
        ''')
    k('s_waitcnt lgkmcnt(0)')
    k('''
    s_cmp_eq_u32 s64, 0
    s_cselect_b32 s32, s4, s14
    s_cselect_b32 s33, s5, s15
    s_cselect_b32 s40, s6, s16
    s_cselect_b32 s41, s7, s17
    s_cselect_b32 s44, s8, s18
    s_cselect_b32 s45, s9, s19
    s_cselect_b32 s36, s10, s20
    s_cselect_b32 s37, s11, s21
    s_cselect_b32 s48, s12, s22
    s_cselect_b32 s49, s13, s23
    ''')
    k('''
    s_mul_i32 s74, s66, 57344
    s_mul_i32 s75, s68, 14336
    s_add_u32 s74, s74, s75
    s_add_u32 s32, s32, s74
    s_addc_u32 s33, s33, 0
    s_mov_b32 s34, 14336
    s_mov_b32 s35, 0x20000
    ''')
    k(f's_mul_i32 s76, s68, {14*1024}')
    xids = []
    for kk in range(14):
        k(f's_add_u32 m0, s76, {X_LDS + kk*1024}')
        so = '0' if kk < 7 else 's77'
        if kk == 0: k('s_movk_i32 s77, 7168')
        else: k('s_nop 0')
        xids.append(k(f'buffer_load_dwordx4 v{16 + kk % 7}, s[32:35], {so} offen {nt_x} lds'))
    k('''
    s_lshl_b32 s74, s69, 9
    s_lshl_b32 s75, s70, 8
    s_add_u32 s74, s74, s75
    s_add_u32 s36, s36, s74
    s_addc_u32 s37, s37, 0
    s_sub_u32 s38, 3670016, s74
    s_mov_b32 s39, 0x20000
    ''')
    k('''
    v_and_b32 v5, 3, v2
    v_lshlrev_b32 v5, 2, v5
    v_lshrrev_b32 v6, 2, v2
    v_add_u32 v5, v5, v6
    v_lshlrev_b32 v5, 4, v5
    v_lshlrev_b32 v6, 16, v3
    v_add_u32 v4, v5, v6
    ''')
    for i in range(1, 8):
        k(f'v_add_u32 v{4+i}, {i*8192}, v4')
    k('''
    s_cmp_eq_u32 s66, 7
    s_cselect_b32 s74, 0, s66
    s_mul_i32 s75, s71, 7
    ''')
    for t in range(7):
        k(f'''
        s_add_u32 s78, s75, s74
        s_lshl_b32 s{80+t}, s78, 18
        s_and_b32 s79, s78, 1
        s_lshl_b32 s{87+t}, s79, 6
        s_lshr_b32 s79, s78, 1
        s_lshl_b32 s{94+t}, s79, 7
        s_add_u32 s74, s74, 1
        s_cmp_eq_u32 s74, 7
        s_cselect_b32 s74, 0, s74
        ''')
    data_last = {}
    def slot(d): return RING0 + (d % NSLOT) * 32
    def load_data(d, i):
        base = slot(d) + 4 * i
        if d < 7:
            idx = k(f'buffer_load_dwordx4 v[{base}:{base+3}], v{4+i}, s[36:39], s{80+d} offen {nt_w}')
        else:
            t = d - 7
            vo = 12 if i < 4 else 13
            idx = k(f'buffer_load_dwordx4 v[{base}:{base+3}], v{vo}, s[48:51], s{4+t} offen offset:{(i%4)*896} {nt_w}')
        if i == 7: data_last[d] = idx
    for d in range(6):
        for i in range(8): load_data(d, i)
    k('''
    s_lshl_b32 s74, s66, 3
    s_lshr_b32 s75, s69, 1
    s_add_u32 s74, s74, s75
    s_lshl_b32 s74, s74, 15
    s_lshl_b32 s75, s68, 13
    s_add_u32 s74, s74, s75
    s_add_u32 s40, s40, s74
    s_addc_u32 s41, s41, 0
    s_mov_b32 s42, 8192
    s_mov_b32 s43, 0x20000
    ''')
    k('''
    s_lshl_b32 s74, s66, 3
    s_lshl_b32 s75, s65, 1
    s_add_u32 s74, s74, s75
    s_lshl_b32 s74, s74, 15
    s_lshl_b32 s75, s68, 14
    s_add_u32 s74, s74, s75
    s_add_u32 s44, s44, s74
    s_addc_u32 s45, s45, 0
    s_mov_b32 s46, 16384
    s_mov_b32 s47, 0x20000
    ''')
    k(f'''
    s_lshl_b32 s74, s65, 2
    s_add_u32 s74, s74, s68
    s_mul_i32 s74, s74, {256*896}
    s_lshl_b32 s75, s67, 8
    s_add_u32 s74, s74, s75
    s_add_u32 s48, s48, s74
    s_addc_u32 s49, s49, 0
    s_sub_u32 s50, 3670016, s74
    s_mov_b32 s51, 0x20000
    ''')
    k('''
    s_mov_b32 s52, s28
    s_mov_b32 s53, s29
    s_mov_b32 s54, 0x10000000
    s_mov_b32 s55, 0x20000
    s_mul_i32 s74, s66, 114688
    s_add_u32 s56, s24, s74
    s_addc_u32 s57, s25, 0
    s_sub_u32 s58, 917504, s74
    s_mov_b32 s59, 0x20000
    s_mov_b32 s60, s26
    s_mov_b32 s61, s27
    s_mov_b32 s62, 256
    s_mov_b32 s63, 0x20000
    ''')
    for t in range(8):
        k(f'''
        s_add_u32 s74, s66, {t}
        s_and_b32 s74, s74, 7
        s_mul_i32 s{4+t}, s74, 28672
        s_lshl_b32 s{12+t}, s74, 6
        ''')
    k('s_mov_b32 s20, 0x3db8aa3b')
    k('''
    v_and_b32 v23, 3, v2
    v_add_u32 v23, s65, v23
    v_and_b32 v23, 3, v23
    v_lshlrev_b32 v23, 2, v23
    v_lshrrev_b32 v24, 2, v2
    v_add_u32 v23, v23, v24
    v_lshlrev_b32 v24, 4, v23
    v_mul_u32_u24 v25, 7168, v3
    v_add_u32 v12, v24, v25
    s_cmp_eq_u32 s67, 3
    s_cselect_b32 s74, 8, 64
    v_cmp_le_u32 vcc, s74, v23
    v_mov_b32 v24, 0x40000000
    v_cndmask_b32 v24, 0, v24, vcc
    v_add_u32 v12, v12, v24
    v_add_u32 v13, 3584, v12
    ''')
    k('''
    v_lshrrev_b32 v25, 5, v0
    v_and_b32 v26, 31, v0
    s_lshl_b32 s74, s68, 2
    v_add_u32 v27, s74, v25
    v_xor_b32 v28, v26, v27
    v_lshlrev_b32 v28, 4, v28
    v_lshlrev_b32 v29, 9, v25
    v_add_u32 v23, v28, v29
    v_add_u32 v27, 2, v27
    v_xor_b32 v28, v26, v27
    v_lshlrev_b32 v28, 4, v28
    v_add_u32 v24, v28, v29
    ''')
    k('''
    v_xor_b32 v28, v26, v25
    v_lshlrev_b32 v28, 4, v28
    v_add_u32 v30, v28, v29
    v_add_u32 v27, 2, v25
    v_xor_b32 v28, v26, v27
    v_lshlrev_b32 v28, 4, v28
    v_add_u32 v27, v28, v29
    v_mov_b32 v26, v30
    ''')
    k(f'''
    v_and_b32 v28, 7, v2
    v_xor_b32 v28, v3, v28
    v_lshlrev_b32 v28, 4, v28
    v_mul_u32_u24 v29, 896, v2
    v_add_u32 v14, v28, v29
    ''')
    if X_LDS: k(f'v_add_u32 v14, {X_LDS}, v14')
    kids = []; vids = []
    def dma_k(kk):
        if kk % 4 == 0:
            k(f's_lshl_b32 s74, s68, 13\n s_add_u32 m0, s74, {K_LDS + (kk//4)*4096}\n s_movk_i32 s75, {(kk//4)*4096}')
        kids.append(k(f'buffer_load_dwordx4 v{23 + kk % 2}, s[40:43], s75 offen offset:{(kk%4)*1024} {nt_kv} lds'))
    def dma_v(kk):
        if kk % 4 == 0:
            k(f's_lshl_b32 s74, s68, 14\n s_add_u32 m0, s74, {V_LDS + (kk//4)*4096}\n s_movk_i32 s75, {(kk//4)*4096}')
        tmp = 28 + kk % 2
        k(f'v_xor_b32 v{tmp}, {64*(kk//4)}, v{26 + kk % 2}')
        vids.append(k(f'buffer_load_dwordx4 v{tmp}, s[44:47], s75 offen offset:{(kk%4)*1024} {nt_kv} lds'))

    def perm(d, j, p):
        s = slot(d)
        a = s + (2*p) * 4 + j // 2
        b = s + (2*p+1) * 4 + j // 2
        sel = 's73' if j % 2 else 's72'
        return f'v_perm_b32 v{FR + 4*j + p}, v{b}, v{a}, {sel}'
    def acc(t, j): return (t * 8 + j) * 4
    frag_ids = {}
    def frag_reads(v):
        st = 128 + (v % 2) * 16
        out = []
        if v < 7:
            out.append(f'v_xor_b32 v15, s{87+v}, v14')
            out.append(f'v_add_u32 v15, s{94+v}, v15')
            for t in range(4): out.append(f'ds_read_b128 a[{st+4*t}:{st+4*t+3}], v15 offset:{t*14336}')
        else:
            out.append(f'v_xor_b32 v15, s{12+v-7}, v14')
            for t, off in enumerate((0, 2048, 16384, 18432)): out.append(f'ds_read_b128 a[{st+4*t}:{st+4*t+3}], v15 offset:{off}')
        return out

    k.wait_vm(xids[-1])
    k('s_barrier')
    last = None
    for s in frag_reads(0): last = k(s) or last
    frag_ids[0] = last
    k.wait_vm(data_last[0])
    for j in range(8):
        for p in range(4): k(perm(0, j, p))

    def step(v, extra):
        first = v in (0, 7); lastp = v in (6, 14)
        st = 128 + (v % 2) * 16
        k.wait_lg(frag_ids[v])
        for j in range(8):
            fill = []
            if j == 0:
                if not first: fill += [perm(v, 7, p) for p in range(4)]
            elif not lastp:
                fill += [perm(v + 1, j - 1, p) for p in range(4)]
            ex = list(extra.get(j, []))
            for t in range(4):
                c = '0' if first else f'a[{acc(t,j)}:{acc(t,j)+3}]'
                if v < 7: k(f'v_mfma_f32_16x16x32_bf16 a[{acc(t,j)}:{acc(t,j)+3}], v[{FR+4*j}:{FR+4*j+3}], a[{st+4*t}:{st+4*t+3}], {c}')
                else: k(f'v_mfma_f32_16x16x32_bf16 a[{acc(t,j)}:{acc(t,j)+3}], a[{st+4*t}:{st+4*t+3}], v[{FR+4*j}:{FR+4*j+3}], {c}')
                if j == 1 and t == 0 and not lastp: k.wait_vm(data_last[v + 1])
                if fill: k(fill.pop(0))
                n = (len(ex) + (3 - t)) // (4 - t)
                for _ in range(n):
                    e = ex.pop(0)
                    if callable(e): e()
                    else: k(e)

    def mk_extra(v):
        ex = {j: [] for j in range(8)}
        d = v + 6
        if d <= 14:
            for i in range(8):
                g = min(7, i + 1) if i < 7 else 7
                ex[g].append(lambda d=d, i=i: load_data(d, i))
        if v == 0:
            for kk in range(8): ex[kk].append(lambda kk=kk: dma_k(kk))
        if v in (1, 2):
            for kk in range(8): ex[kk].append(lambda kk=kk, v=v: dma_v((v-1)*8 + kk))
        if v not in (6, 14):
            fr = frag_reads(v + 1)
            def rd(fr=fr, v=v):
                last = None
                for s in fr: last = k(s) or last
                frag_ids[v + 1] = last
            ex[3].append(rd)
        return ex

    for v in range(7): step(v, mk_extra(v))

    k(f'''
    v_lshrrev_b32 v16, 2, v2
    v_and_b32 v17, 3, v2
    v_lshlrev_b32 v18, 4, v16
    v_add_u32 v18, v18, v17
    v_lshlrev_b32 v18, 9, v18
    v_lshlrev_b32 v19, 6, v16
    v_add_u32 v18, v18, v19
    v_xor_b32 v19, v3, v17
    v_lshlrev_b32 v19, 4, v19
    v_add_u32 v18, v18, v19
    s_lshl_b32 s74, s70, 8
    s_add_u32 s74, s74, {K_LDS}
    v_add_u32 v4, s74, v18
    v_xor_b32 v5, 64, v4
    v_xor_b32 v6, 128, v4
    v_xor_b32 v7, 192, v4
    ''')
    k(f'''
    v_lshlrev_b32 v18, 3, v16
    v_add_u32 v18, v18, v17
    v_lshlrev_b32 v18, 9, v18
    v_lshlrev_b32 v20, 6, v16
    v_add_u32 v18, v18, v20
    v_add_u32 v18, v18, v19
    s_lshl_b32 s74, s71, 15
    s_add_u32 s74, s74, {V_LDS}
    v_add_u32 v14, s74, v18
    ''')
    k('''
    s_lshl_b32 s74, s68, 14
    v_add_u32 v8, s74, v1
    s_lshl_b32 s74, s68, 12
    v_add_u32 v9, s74, v1
    ''')
    k.wait_vm(kids[-1])
    k('s_barrier')
    kf = {}
    def kreads(r):
        st = 128 + (r % 2) * 16
        last = None
        for u in range(4): last = k(f'ds_read_b128 a[{st+4*u}:{st+4*u+3}], v{4+r} offset:{u*2048}')
        kf[r] = last
    def qconv(r):
        out = []
        base = FR + 16 * (r % 2)
        for t in range(4):
            for p in range(4):
                t0 = 20 + 2 * (p % 2);
                out.append(f'v_accvgpr_read_b32 v{t0}, a{acc(t, 2*p) + r}')
                out.append(f'v_accvgpr_read_b32 v{t0+1}, a{acc(t, 2*p+1) + r}')
                out.append(f'v_cvt_pk_bf16_f32 v{base + 4*t + p}, v{t0}, v{t0+1}')
        return out
    def sacc(t, u): return 160 + (t * 4 + u) * 4
    kreads(0)
    for s in qconv(0): k(s)
    for r in range(4):
        if r < 3: kreads(r + 1)
        nxt = qconv(r + 1) if r < 3 else []
        k.wait_lg(kf[r])
        st = 128 + (r % 2) * 16
        base = FR + 16 * (r % 2)
        for t in range(4):
            for u in range(4):
                c = '0' if r == 0 else f'a[{sacc(t,u)}:{sacc(t,u)+3}]'
                k(f'v_mfma_f32_16x16x32_bf16 a[{sacc(t,u)}:{sacc(t,u)+3}], a[{st+4*u}:{st+4*u+3}], v[{base+4*t}:{base+4*t+3}], {c}')
                for _ in range(3):
                    if nxt: k(nxt.pop(0))
    for t in range(4):
        for u in range(4):
            k(f'ds_write_b128 v8, a[{sacc(t,u)}:{sacc(t,u)+3}] offset:{SB + (t*4+u)*1024}')
    k.wait_vm(vids[-1])
    k.wait_all_lg()
    k('s_barrier')
    rid = {}
    def sreads(u):
        st = FR + 16 * (u % 2)
        last = None
        for w2 in range(4): last = k(f'ds_read_b128 v[{st+4*w2}:{st+4*w2+3}], v9 offset:{SB + w2*16384 + u*1024}')
        rid[u] = last
    sreads(0); sreads(1)
    for u in range(4):
        st = FR + 16 * (u % 2)
        k.wait_lg(rid[u])
        for r in range(4):
            k(f'v_add_f32 v{st+r}, v{st+r}, v{st+4+r}')
            k(f'v_add_f32 v{st+8+r}, v{st+8+r}, v{st+12+r}')
        for r in range(4):
            k(f'v_add_f32 v{16+4*u+r}, v{st+r}, v{st+8+r}')
        if u + 2 < 4: sreads(u + 2)
    last = None
    for s in frag_reads(7): last = k(s) or last
    frag_ids[7] = last
    for p in range(8):
        a, b = 16 + 2*p, 17 + 2*p
        k(f'v_cvt_pk_bf16_f32 v{32+p}, v{a}, v{b}')
    for p in range(8):
        a, b = 16 + 2*p, 17 + 2*p
        k(f'v_lshlrev_b32 v{a}, 16, v{32+p}')
        k(f'v_and_b32 v{b}, 0xffff0000, v{32+p}')
    k('v_max3_f32 v40, v16, v17, v18')
    for p in range(6): k(f'v_max3_f32 v40, v40, v{19+2*p}, v{20+2*p}')
    k('v_max_f32 v40, v40, v31')
    def xlane(op, reg, tmp):
        k(f'v_mov_b32 v{tmp}, v{reg}')
        k(f'v_permlane16_swap_b32 v{reg}, v{tmp}')
        k(f'{op} v{reg}, v{reg}, v{tmp}')
        k(f'v_mov_b32 v{tmp}, v{reg}')
        k(f'v_permlane32_swap_b32 v{reg}, v{tmp}')
        k(f'{op} v{reg}, v{reg}, v{tmp}')
    xlane('v_max_f32', 40, 41)
    k('v_mul_f32 v40, s20, v40')
    for e in range(16): k(f'v_fma_f32 v{16+e}, v{16+e}, s20, -v40')
    for e in range(16): k(f'v_exp_f32 v{16+e}, v{16+e}')
    for e in range(8): k(f'v_add_f32 v{44+e}, v{16+2*e}, v{17+2*e}')
    for e in range(4): k(f'v_add_f32 v{44+e}, v{44+e}, v{48+e}')
    k('v_add_f32 v44, v44, v45\n v_add_f32 v46, v46, v47\n v_add_f32 v44, v44, v46')
    xlane('v_add_f32', 44, 41)
    k('v_rcp_f32 v44, v44')
    for e in range(16): k(f'v_mul_f32 v{16+e}, v{16+e}, v44')
    for p in range(8): k(f'v_cvt_pk_bf16_f32 v{32+p}, v{16+2*p}, v{17+2*p}')
    k(f'''
    s_lshl_b32 s74, s64, 3
    s_add_u32 s74, s74, s66
    s_lshl_b32 s21, s74, 4
    s_add_u32 s74, s21, s69
    s_lshl_b32 s22, s74, 13
    s_lshl_b32 s75, s68, 11
    s_add_u32 s75, s75, s22
    v_lshrrev_b32 v40, 1, v3
    v_lshlrev_b32 v40, 10, v40
    v_and_b32 v41, 1, v3
    v_lshlrev_b32 v41, 9, v41
    v_add_u32 v40, v40, v41
    v_lshlrev_b32 v41, 4, v2
    v_add_u32 v10, v40, v41
    ''')
    k(f'buffer_store_dwordx4 v[32:35], v10, s[52:55], s75 offen offset:{P_WS} sc1')
    pst = k(f'buffer_store_dwordx4 v[36:39], v10, s[52:55], s75 offen offset:{P_WS+256} sc1')
    k('''
    s_lshl_b32 s74, s65, 2
    s_add_u32 s74, s74, s67
    s_add_u32 s23, s21, s74
    s_cmp_eq_u32 s68, 0
    s_cselect_b32 s74, s23, 0x4000
    v_mov_b32 v11, s74
    v_mov_b32 v40, 0x4000
    v_cmp_eq_u32 vcc, 0, v0
    v_cndmask_b32 v11, v40, v11, vcc
    v_mov_b32 v4, s21
    ''')
    k.wait_vm(data_last[7])
    for j in range(8):
        for p in range(4): k(perm(7, j, p))
    poll = {}
    for v in range(7, 15):
        ex = mk_extra(v)
        if v == 8:
            def sig1():
                k.wait_vm(pst)
                k('s_barrier')
                k('v_mov_b32 v5, 1')
                k('buffer_store_byte v5, v11, s[60:63], 0 offen sc1')
            ex[7].append(sig1)
        if v == 11:
            def poll1():
                poll['id'] = k('buffer_load_dwordx4 v[16:19], v4, s[60:63], 0 offen sc1')
            ex[0].append(poll1)
        if v == 12:
            def chk1():
                k.wait_vm(poll['id'])
                lab = k.newlabel('L_x1'); ok = k.newlabel('L_x1ok')
                k('s_mov_b32 s79, 0x40000')
                k.label(lab)
                k('''
                v_readfirstlane_b32 s74, v16
                v_readfirstlane_b32 s75, v17
                v_readfirstlane_b32 s76, v18
                v_readfirstlane_b32 s77, v19
                s_cmp_eq_u32 s65, 1
                s_cselect_b32 s74, s75, s74
                s_cmp_eq_u32 s65, 2
                s_cselect_b32 s74, s76, s74
                s_cmp_eq_u32 s65, 3
                s_cselect_b32 s74, s77, s74
                s_lshr_b32 s75, s74, 1
                s_or_b32 s74, s74, s75
                s_and_b32 s74, s74, 0x01010101
                s_cmp_eq_u32 s74, 0x01010101
                ''')
                k(f's_cbranch_scc1 {ok}')
                k('s_sub_u32 s79, s79, 1')
                k(f's_cbranch_scc1 {ok}')
                k('buffer_load_dwordx4 v[16:19], v4, s[60:63], 0 offen sc1')
                k('s_waitcnt vmcnt(0)')
                k(f's_branch {lab}')
                k.label(ok)
                k('''
                s_lshl_b32 s74, s65, 2
                s_add_u32 s74, s74, s21
                s_lshl_b32 s74, s74, 13
                s_lshl_b32 s75, s68, 11
                s_add_u32 s74, s74, s75
                ''')
                for hh in range(4):
                    for u in range(2):
                        r = 224 + (hh * 2 + u) * 4
                        poll[('p', hh, u)] = k(f'buffer_load_dwordx4 a[{r}:{r+3}], v1, s[52:55], s74 offen offset:{P_WS + u*1024} sc1')
                    if hh < 3: k('s_add_u32 s74, s74, 8192')
            ex[2].append(chk1)
        step(v, ex)
    for j in range(8):
        for u in range(2):
            base = FR + 4 * ((j * 2 + u) % 8)
            for hlf in range(2):
                t = 2 * u + hlf
                for pr in range(2):
                    t0 = 20 + 2 * pr + 4 * hlf
                    k(f'v_accvgpr_read_b32 v{t0}, a{acc(t,j) + 2*pr}')
                    k(f'v_accvgpr_read_b32 v{t0+1}, a{acc(t,j) + 2*pr + 1}')
                    k(f'v_cvt_pk_bf16_f32 v{base + 2*hlf + pr}, v{t0}, v{t0+1}')
            k(f'ds_write_b128 v8, v[{base}:{base+3}] offset:{VB + (j*2+u)*1024}')
    k.wait_all_lg()
    k('s_barrier')
    order = [(hh, u, j) for hh in range(4) for u in range(2) for j in range(8)]
    NB = 12
    rids = {}
    def fread(n):
        hh, u, j = order[n]
        r = (n % 16) * 4
        rids[n] = k(f'ds_read_b128 a[{r}:{r+3}], v1 offset:{VB + hh*16384 + (2*j+u)*1024}')
    for n in range(NB): fread(n)
    for n, (hh, u, j) in enumerate(order):
        if j == 0: k.wait_vm(poll[('p', hh, u)])
        k.wait_lg(rids[n])
        r = (n % 16) * 4
        pr = 224 + (hh * 2 + u) * 4
        c = '0' if (hh == 0 and u == 0) else f'a[{160+4*j}:{160+4*j+3}]'
        k(f'v_mfma_f32_16x16x32_bf16 a[{160+4*j}:{160+4*j+3}], a[{r}:{r+3}], a[{pr}:{pr+3}], {c}')
        if n + NB < len(order): fread(n + NB)
    for r in (1, 2, 3, 0):
        for j in range(8): k(f'v_accvgpr_read_b32 v{32 + r*8 + j}, a{160 + 4*j + r}')
    xst = None
    for r in (1, 2, 3):
        k(f'''
        s_add_u32 s74, s65, {r}
        s_and_b32 s74, s74, 3
        s_lshl_b32 s74, s74, 2
        s_add_u32 s74, s74, s67
        s_add_u32 s74, s74, s21
        s_lshl_b32 s74, s74, 15
        s_lshl_b32 s75, s68, 11
        s_add_u32 s74, s74, s75
        s_add_u32 s74, s74, {X2_WS + (r-1)*8192}
        ''')
        for e in range(2):
            xst = k(f'buffer_store_dwordx4 v[{32+r*8+4*e}:{32+r*8+4*e+3}], v1, s[52:55], s74 offen offset:{e*1024} sc1')
    k.wait_all_vm()
    k('s_barrier')
    k('v_mov_b32 v5, 2')
    k('buffer_store_byte v5, v11, s[60:63], 0 offen sc1')
    k('''
    s_lshl_b32 s74, s68, 4
    v_add_u32 v6, s74, v2
    v_mul_u32_u24 v6, 1792, v6
    s_lshl_b32 s74, s67, 7
    s_lshl_b32 s75, s65, 5
    s_add_u32 s74, s74, s75
    s_mul_i32 s75, s64, 448
    s_add_u32 s75, s75, s74
    s_lshl_b32 s75, s75, 1
    s_cmp_ge_u32 s74, 448
    s_cselect_b32 s75, 0x40000000, s75
    v_lshlrev_b32 v7, 4, v3
    v_add3_u32 v6, v6, v7, s75
    s_lshl_b32 s78, s67, 3
    ''')
    lab = k.newlabel('L_x2'); ok2 = k.newlabel('L_x2ok')
    k('s_mov_b32 s79, 0x40000')
    k.label(lab)
    k('s_sub_u32 s79, s79, 1')
    k(f's_cbranch_scc1 {ok2}')
    k('''
    buffer_load_dwordx4 v[16:19], v4, s[60:63], 0 offen sc1
    s_waitcnt vmcnt(0)
    v_readfirstlane_b32 s74, v16
    v_readfirstlane_b32 s75, v17
    v_readfirstlane_b32 s76, v18
    v_readfirstlane_b32 s77, v19
    s_and_b32 s74, s74, s75
    s_and_b32 s76, s76, s77
    s_and_b32 s74, s74, s76
    s_lshr_b32 s74, s74, s78
    s_and_b32 s74, s74, 2
    s_cmp_eq_u32 s74, 2
    ''')
    k(f's_cbranch_scc0 {lab}')
    k.label(ok2)
    k.vm_done = k.vm_issued
    k(f'''
    s_add_u32 s74, s23, 0
    s_lshl_b32 s74, s74, 15
    s_lshl_b32 s75, s68, 11
    s_add_u32 s74, s74, s75
    s_add_u32 s74, s74, {X2_WS}
    ''')
    ld = []
    for sl in range(3):
        for e in range(2):
            r = 64 + (sl * 2 + e) * 4
            ld.append(k(f'buffer_load_dwordx4 v[{r}:{r+3}], v1, s[52:55], s74 offen offset:{e*1024} sc1'))
        if sl < 2: k('s_add_u32 s74, s74, 8192')
    for sl in range(3):
        k.wait_vm(ld[sl*2+1])
        for e in range(8):
            k(f'v_add_f32 v{32+e}, v{32+e}, v{64 + sl*8 + e}')
    for p in range(4): k(f'v_cvt_pk_bf16_f32 v{40+p}, v{32+2*p}, v{33+2*p}')
    k('buffer_store_dwordx4 v[40:43], v6, s[56:59], 0 offen')
    k.label('L_end')
    k('s_endpgm')
    body = k.finalize()
    print('instructions', len(k.ins), 'nops inserted', k.nnop, file=sys.stderr)
    return wrap(body, vgpr=512, accum=256, lds=163840)

if __name__ == '__main__':
    out = sys.argv[1] if len(sys.argv) > 1 else 'v1.s'
    open(out, 'w').write(gen())
```
